```python
import torch

def _softmax(x, axis=-1):
    return torch.softmax(x, dim=axis)

def _gelu(x):
    return torch.nn.functional.gelu(x, approximate='tanh')

def _silu(x):
    return torch.nn.functional.silu(x)

def _sigmoid(x):
    return torch.sigmoid(x)

def _layernorm(x, axis=-1, eps=1e-05):
    m = x.mean(dim=axis, keepdim=True)
    v = x.var(dim=axis, keepdim=True, unbiased=False)
    return (x - m) / torch.sqrt(v + eps)

def _scatter_add(tgt, idx, src, axis=0):
    return tgt.clone().index_add_(axis, idx, src)

def _segment_sum(src, seg, n):
    out = torch.zeros((n,) + src.shape[1:], dtype=src.dtype)
    return out.index_add_(0, seg, src)

def _pad(x, pw):
    flat = tuple((v for pair in reversed(pw) for v in pair))
    return torch.nn.functional.pad(x, flat)
kernel_name = 'parallel_sum__memory_aug_recurrent_mem_tr__glu_gated_geglu__prompt'

def setup_inputs():

    _w = lambda a: (lambda t: t.to(torch.bfloat16) if t.is_floating_point() else t)(torch.as_tensor(a))

    def _A_setup():
        B, S, Dm = (1, 2048, 512)
        H, Dh = (32, 128)
        M, seg = (8, 32)
        seg = min(seg, S)
        S = S // seg * seg
        return {'x': _w((lambda *s: torch.randn(*s, dtype=torch.bfloat16) * 0.05)(B, S, Dm)), 'mem0': _w((lambda *s: torch.randn(*s, dtype=torch.bfloat16) * 0.2)(B, M, Dm)), 'Wq': _w((lambda *s: torch.randn(*s, dtype=torch.bfloat16) * 1.6)(Dm, H, Dh) * Dm ** (-0.5)), 'Wk': _w((lambda *s: torch.randn(*s, dtype=torch.bfloat16) * 1.6)(Dm, H, Dh) * Dm ** (-0.5)), 'Wv': _w((lambda *s: torch.randn(*s, dtype=torch.bfloat16) * 0.2)(Dm, H, Dh) * Dm ** (-0.5)), 'Wo': _w((lambda *s: torch.randn(*s, dtype=torch.bfloat16) * 0.2)(H, Dh, Dm) * (H * Dh) ** (-0.5)), 'seg_len': seg}
    _A_in = _A_setup()

    def _B_setup():
        B, S, Dm, Df = (1, 2048, 512, 1792)
        return {'x': _w((lambda *s: torch.randn(*s, dtype=torch.bfloat16) * 0.05)(B, S, Dm)), 'w_gate': _w((lambda *s: torch.randn(*s, dtype=torch.bfloat16) * 0.4)(Dm, Df) * Dm ** (-0.5)), 'w_up': _w((lambda *s: torch.randn(*s, dtype=torch.bfloat16) * 0.4)(Dm, Df) * Dm ** (-0.5)), 'w_down': _w((lambda *s: torch.randn(*s, dtype=torch.bfloat16) * 0.4)(Df, Dm) * Df ** (-0.5))}
    _B_in = _B_setup()
    return {'A_x': _A_in['x'], 'A_mem0': _A_in['mem0'], 'A_Wq': _A_in['Wq'], 'A_Wk': _A_in['Wk'], 'A_Wv': _A_in['Wv'], 'A_Wo': _A_in['Wo'], 'A_seg_len': _A_in['seg_len'], 'B_x': _B_in['x'], 'B_w_gate': _B_in['w_gate'], 'B_w_up': _B_in['w_up'], 'B_w_down': _B_in['w_down']}

def reference(A_x, A_mem0, A_Wq, A_Wk, A_Wv, A_Wo, A_seg_len, B_x, B_w_gate, B_w_up, B_w_down):

    def _A_ref(x, mem0, Wq, Wk, Wv, Wo, seg_len):
        B, S, Dm = x.shape
        H, Dh = (Wq.shape[1], Wq.shape[2])
        M = mem0.shape[1]
        scale = Dh ** (-0.5)
        n_seg = S // seg_len
        L = M + seg_len
        idx = torch.arange(L)
        mask = (idx[:, None] < M) | (idx[:, None] >= idx[None, :])
        mem = mem0
        outs = []
        for s in range(n_seg):
            xs = x[:, s * seg_len:(s + 1) * seg_len, :].clone()
            h = torch.concatenate([mem, xs], axis=1)
            q = torch.einsum('btd,dhe->bhte', h, Wq)
            k = torch.einsum('btd,dhe->bhte', h, Wk)
            v = torch.einsum('btd,dhe->bhte', h, Wv)
            scores = torch.einsum('bhqe,bhke->bhqk', q, k) * scale
            scores = torch.where(mask[None, None], scores, -1000000000.0)
            p = _softmax(scores, axis=-1)
            o = torch.einsum('bhqk,bhke->bhqe', p, v)
            o = torch.einsum('bhte,hed->btd', o, Wo)
            mem = o[:, :M, :].clone()
            outs.append(o[:, M:, :])
        return torch.concatenate(outs, axis=1)

    def _B_ref(x, w_gate, w_up, w_down):
        g = torch.einsum('bsd,df->bsf', x, w_gate)
        u = torch.einsum('bsd,df->bsf', x, w_up)
        h = _gelu(g) * u
        return torch.einsum('bsf,fd->bsd', h, w_down)
    x = A_x
    xn = _layernorm(x, axis=-1)
    return x + _A_ref(xn, A_mem0, A_Wq, A_Wk, A_Wv, A_Wo, A_seg_len) + _B_ref(xn, B_w_gate, B_w_up, B_w_down)
```

```python
class Asm:
    def __init__(self):
        self.L = []
        self._n = 0

    def __call__(self, s):
        for line in s.split("\n"):
            line = line.strip()
            if line:
                self.L.append("  " + line)

    def label(self, name):
        self.L.append(name + ":")

    def raw(self, s):
        self.L.append(s)

    def uniq(self, base):
        self._n += 1
        return f"L{base}_{self._n}"

    def text(self):
        return "\n".join(self.L) + "\n"


def vr(b, n=1):
    return f"v{b}" if n == 1 else f"v[{b}:{b+n-1}]"


def ar(b, n=1):
    return f"a{b}" if n == 1 else f"a[{b}:{b+n-1}]"


def sr(b, n=1):
    return f"s{b}" if n == 1 else f"s[{b}:{b+n-1}]"


def xr(b, n=1):
    return vr(b, n) if b < 256 else ar(b - 256, n)


import struct


def f32(x):
    return "0x%08x" % struct.unpack("<I", struct.pack("<f", x))[0]
```

```python
from asmlib import *
import math

FLG = 0x0000000
XN = 0x0100000
MEMP = 0x0300000
TP = 0x0400000
KM = 0x0800000
VM = 0x0C00000
KB = 0x1000000
VB = 0x2000000
OB = 0x3000000
HB = 0x4000000
PART = 0x5000000
WS_BYTES = 0x10000000

P_X, P_MEM0, P_WQ, P_WK, P_WV, P_WO = 4, 6, 8, 10, 12, 14
P_WG, P_WU, P_WD, P_OUT, P_DBG, P_WS = 20, 22, 24, 26, 28, 30
S_WS = 32
S_A = 36
S_B = 40
S_DBG = 44
S_WAVE = 48
S_INST = 49
S_SYNC = 50
S_SEG = 51
S_T0 = 52
S_PSEL_LO = 64
S_PSEL_HI = 65
S_MASK = 66

V_TID, V_LANE, V_L16 = 0, 1, 2

FL_K = 0
FL_V = 128
FL_O = 256
FL_H = 384
FL_P = 512
FL_T = 768
FL_WORDS = 1024
DB_XCC = 0
DB_WIN = 8
DB_TICKET = 9
DB_INIT = 10
DB_TBAR = 11
DB_LN = 32

SPIN_MAX = 1 << 22


def make_srd(A, s, ptr, nbytes):
    A(f"""s_mov_b32 s{s}, s{ptr}
    s_mov_b32 s{s+1}, s{ptr+1}
    s_mov_b32 s{s+2}, {nbytes}
    s_mov_b32 s{s+3}, 0x00020000""")


def prologue(A):
    A(f"""s_load_dwordx16 s[4:19], s[0:1], 0
    s_load_dwordx8 s[20:27], s[0:1], 64
    s_load_dwordx4 s[28:31], s[0:1], 96
    v_lshrrev_b32 v3, 6, v0
    v_and_b32 v{V_LANE}, 63, v0
    v_lshlrev_b32 v{V_L16}, 4, v{V_LANE}
    v_readfirstlane_b32 s{S_WAVE}, v3
    s_mov_b32 s{S_PSEL_LO}, 0x05040100
    s_mov_b32 s{S_PSEL_HI}, 0x07060302
    s_waitcnt lgkmcnt(0)""")
    make_srd(A, S_WS, P_WS, WS_BYTES)
    make_srd(A, S_DBG, P_DBG, 256)


def wait_words(A, srd, vaddr, soff, nlanes, thr_sgpr, vtmp, cmp="gt"):
    lp = A.uniq("wait")
    done = A.uniq("waitd")
    mask = (1 << nlanes) - 1
    A(f"""s_cmp_eq_u32 s{S_SYNC}, 0
    s_cbranch_scc1 {done}
    s_mov_b32 s{S_T0}, 0
    s_mov_b32 s{S_T0+2}, {mask & 0xffffffff}
    s_mov_b32 s{S_T0+3}, {mask >> 32}""")
    A.label(lp)
    A(f"""buffer_load_dword v{vtmp}, v{vaddr}, s[{srd}:{srd+3}], {soff} offen sc1
    s_add_u32 s{S_T0}, s{S_T0}, 1
    s_cmp_gt_u32 s{S_T0}, {SPIN_MAX}
    s_cbranch_scc1 {done}
    s_waitcnt vmcnt(0)
    v_cmp_{cmp}_u32 vcc, v{vtmp}, s{thr_sgpr}
    s_and_b64 vcc, vcc, s[{S_T0+2}:{S_T0+3}]
    s_cmp_eq_u64 vcc, s[{S_T0+2}:{S_T0+3}]
    s_cbranch_scc1 {done}
    s_sleep 2
    s_branch {lp}""")
    A.label(done)
    A("s_waitcnt vmcnt(0)")


def signal_word(A, soff_sgpr, val_sgpr, vtmp, vtmp2):
    done = A.uniq("sig")
    A(f"""s_waitcnt vmcnt(0)
    s_cmp_eq_u32 s{S_SYNC}, 0
    s_cbranch_scc1 {done}
    v_mov_b32 v{vtmp}, s{val_sgpr}
    v_mov_b32 v{vtmp2}, 0
    s_mov_b64 exec, 1
    buffer_store_dword v{vtmp}, v{vtmp2}, s[{S_WS}:{S_WS+3}], s{soff_sgpr} offen sc1
    s_mov_b64 exec, -1""")
    A.label(done)


def half_wave_sum(A, v, t):
    A(f"""s_nop 1
    v_add_f32_dpp v{v}, v{v}, v{v} quad_perm:[1,0,3,2] row_mask:0xf bank_mask:0xf
    s_nop 1
    v_add_f32_dpp v{v}, v{v}, v{v} quad_perm:[2,3,0,1] row_mask:0xf bank_mask:0xf
    s_nop 1
    v_add_f32_dpp v{v}, v{v}, v{v} row_half_mirror row_mask:0xf bank_mask:0xf
    s_nop 1
    v_add_f32_dpp v{v}, v{v}, v{v} row_mirror row_mask:0xf bank_mask:0xf
    v_mov_b32 v{t}, v{v}
    s_nop 1
    v_permlane16_swap_b32 v{v}, v{t}
    s_nop 1
    v_add_f32 v{v}, v{v}, v{t}""")


def rne1(A, v, t):
    A(f"""v_cvt_pk_bf16_f32 v{t}, v{v}, v{v}
    v_lshlrev_b32 v{v}, 16, v{t}""")


def ln_load(A, sb):
    make_srd(A, S_A, P_X, 2048 * 1024)
    A(f"""s_lshl_b32 s{S_T0}, s{sb}, 3
    s_lshl_b32 s{S_T0+1}, s{S_WAVE}, 1
    s_add_u32 s{S_T0}, s{S_T0}, s{S_T0+1}
    s_lshl_b32 s{S_T0}, s{S_T0}, 10
    v_lshlrev_b32 v4, 5, v{V_LANE}
    buffer_load_dwordx4 v[8:11], v4, s[{S_A}:{S_A+3}], s{S_T0} offen
    buffer_load_dwordx4 v[12:15], v4, s[{S_A}:{S_A+3}], s{S_T0} offen offset:16""")


def ln_compute(A, sb):
    for i in range(8):
        A(f"v_lshlrev_b32 v{16+2*i}, 16, v{8+i}")
        A(f"v_and_b32 v{17+2*i}, 0xffff0000, v{8+i}")
    for i in range(8):
        A(f"v_add_f32 v{32+i}, v{16+2*i}, v{17+2*i}")
    for i in range(4):
        A(f"v_add_f32 v{32+i}, v{32+i}, v{36+i}")
    A("""v_add_f32 v32, v32, v34
    v_add_f32 v33, v33, v35
    v_add_f32 v32, v32, v33""")
    half_wave_sum(A, 32, 33)
    A(f"v_mul_f32 v32, {f32(1.0/512)}, v32")
    A("v_sub_f32 v34, v16, v32")
    A("v_mul_f32 v33, v34, v34")
    for i in range(1, 16):
        A(f"v_sub_f32 v34, v{16+i}, v32")
        A("v_fmac_f32 v33, v34, v34")
    half_wave_sum(A, 33, 34)
    A(f"v_mul_f32 v33, {f32(1.0/512)}, v33")
    rne1(A, 32, 34)
    rne1(A, 33, 34)
    A(f"v_add_f32 v33, {f32(1e-5)}, v33")
    rne1(A, 33, 34)
    A("v_sqrt_f32 v33, v33\ns_nop 0")
    rne1(A, 33, 34)
    A("v_rcp_f32 v33, v33")
    for i in range(16):
        A(f"v_sub_f32 v{16+i}, v{16+i}, v32")
    for i in range(8):
        A(f"v_cvt_pk_bf16_f32 v{8+i}, v{16+2*i}, v{17+2*i}")
    for i in range(8):
        A(f"v_lshlrev_b32 v{16+2*i}, 16, v{8+i}")
        A(f"v_and_b32 v{17+2*i}, 0xffff0000, v{8+i}")
    for i in range(16):
        A(f"v_mul_f32 v{16+i}, v{16+i}, v33")
    dst = [40, 41, 44, 45, 42, 43, 46, 47]
    for i in range(8):
        A(f"v_cvt_pk_bf16_f32 v{dst[i]}, v{16+2*i}, v{17+2*i}")
    A(f"""v_and_b32 v4, 31, v{V_LANE}
    v_lshlrev_b32 v4, 8, v4
    v_lshrrev_b32 v5, 5, v{V_LANE}
    v_lshl_add_u32 v4, v5, 4, v4
    s_lshl_b32 s{S_T0}, s{S_WAVE}, 5
    v_add_u32 v4, s{S_T0}, v4
    ds_write_b128 v4, v[40:43]
    ds_write_b128 v4, v[44:47] offset:128
    v_lshlrev_b32 v5, 4, v0
    s_waitcnt lgkmcnt(0)
    s_barrier
    ds_read_b128 v[8:11], v5
    ds_read_b128 v[12:15], v5 offset:4096
    v_lshrrev_b32 v6, 3, v0
    v_lshlrev_b32 v6, 9, v6
    v_and_b32 v7, 7, v0
    v_lshl_add_u32 v6, v7, 4, v6
    s_lshr_b32 s{S_T0}, s{sb}, 2
    s_lshl_b32 s{S_T0}, s{S_T0}, 15
    s_and_b32 s{S_T0+1}, s{sb}, 3
    s_lshl_b32 s{S_T0+1}, s{S_T0+1}, 7
    s_add_u32 s{S_T0}, s{S_T0}, s{S_T0+1}
    s_add_u32 s{S_T0}, s{S_T0}, {XN}
    s_add_u32 s{S_T0+1}, s{S_T0}, 16384
    s_waitcnt lgkmcnt(0)
    buffer_store_dwordx4 v[8:11], v6, s[{S_WS}:{S_WS+3}], s{S_T0} offen sc1
    buffer_store_dwordx4 v[12:15], v6, s[{S_WS}:{S_WS+3}], s{S_T0+1} offen sc1
    s_waitcnt vmcnt(0)
    s_barrier""")
    skip = A.uniq("lnsig")
    A(f"""s_cmp_lg_u32 s{S_WAVE}, 0
    s_cbranch_scc1 {skip}
    s_lshr_b32 s{S_T0}, s{sb}, 3
    s_lshl_b32 s{S_T0}, s{S_T0}, 2
    s_add_u32 s{S_T0}, s{S_T0}, {DB_LN*4}
    v_mov_b32 v4, 0
    v_mov_b32 v5, 1
    s_mov_b64 exec, 1
    buffer_atomic_add v5, v4, s[{S_DBG}:{S_DBG+3}], s{S_T0} offen
    s_mov_b64 exec, -1""")
    A.label(skip)


ROWSEL = [0, 1, 2, 3, 8, 9, 10, 11]


def wload(A, RS, NK, s_base, two=False):
    NP = NK // 2
    vo, va, va2 = 4, 5, 6
    A(f"""v_and_b32 v7, {7 if two else 15}, v{V_LANE}
    v_lshlrev_b32 v{vo}, 4, v7
    v_lshrrev_b32 v7, 5, v{V_LANE}
    v_mul_u32_u24 v8, {16*RS}, v7
    v_add_u32 v{vo}, v{vo}, v8
    v_bfe_u32 v9, v{V_LANE}, 4, 1
    v_mul_u32_u24 v8, {4*RS}, v9
    v_add_u32 v{vo}, v{vo}, v8
    v_lshlrev_b32 v{va}, 12, v7
    v_lshl_add_u32 v{va}, v9, 9, v{va}
    v_bfe_u32 v8, v{V_LANE}, 2, 2
    v_lshl_add_u32 v{va}, v8, 10, v{va}
    v_and_b32 v8, 3, v{V_LANE}
    v_lshl_add_u32 v{va}, v8, 7, v{va}
    s_lshl_b32 s{S_T0}, s{S_WAVE}, 13
    v_add_u32 v{va}, s{S_T0}, v{va}
    v_add_u32 v{va2}, 0x10000, v{va}
    s_mul_i32 s{S_T0}, s{S_WAVE}, {32*RS}
    s_add_u32 s{S_T0}, s{S_T0}, s{s_base}""")
    npass = (NP + 3) // 4
    last_partial = NP % 4
    LB = 16
    skipl = A.uniq("wl_skip")
    for i in range(npass):
        if i == npass - 1 and last_partial:
            A(f"s_cmp_ge_u32 s{S_WAVE}, {last_partial}\ns_cbranch_scc1 {skipl}")
        for j in range(8):
            A(f"s_add_u32 s{S_T0+1}, s{S_T0}, {(128*i + ROWSEL[j])*RS}")
            r = LB + 32 * i + 4 * j
            if two:
                A(f"""s_mov_b32 exec_lo, 0x00ff00ff
                s_mov_b32 exec_hi, 0x00ff00ff
                buffer_load_dwordx4 v[{r}:{r+3}], v{vo}, s[{S_A}:{S_A+3}], s{S_T0+1} offen
                s_mov_b32 exec_lo, 0xff00ff00
                s_mov_b32 exec_hi, 0xff00ff00
                buffer_load_dwordx4 v[{r}:{r+3}], v{vo}, s[{S_B}:{S_B+3}], s{S_T0+1} offen
                s_mov_b64 exec, -1""")
            else:
                A(f"buffer_load_dwordx4 v[{r}:{r+3}], v{vo}, s[{S_A}:{S_A+3}], s{S_T0+1} offen")
    A.label(skipl)
    A("s_waitcnt vmcnt(0)")
    skip2 = A.uniq("wl_skip2")
    T = 144
    for i in range(npass):
        if i == npass - 1 and last_partial:
            A(f"s_cmp_ge_u32 s{S_WAVE}, {last_partial}\ns_cbranch_scc1 {skip2}")
        for c in range(8):
            t = T + 4 * (c % 4)
            for q in range(4):
                ra = LB + 32 * i + 4 * (2 * q) + (c >> 1)
                rb = LB + 32 * i + 4 * (2 * q + 1) + (c >> 1)
                sel = S_PSEL_HI if (c & 1) else S_PSEL_LO
                A(f"v_perm_b32 v{t+q}, v{rb}, v{ra}, s{sel}")
            off = i * 32768 + c * 16
            if off >= 65536:
                A(f"ds_write_b128 v{va2}, v[{t}:{t+3}] offset:{off-65536}")
            else:
                A(f"ds_write_b128 v{va}, v[{t}:{t+3}] offset:{off}")
            if c % 4 == 3:
                A("s_waitcnt lgkmcnt(0)")
    A.label(skip2)
    A("s_waitcnt lgkmcnt(0)\ns_barrier")


ACC = 64
WR = 128
V_L16B = 3


def gemm_seg(A, NK, s_src, swap=False):
    for kk in range(NK):
        if kk % 4 == 0 and kk:
            A(f"s_add_u32 s{s_src}, s{s_src}, 4096")
        A(f"buffer_load_dwordx4 a[{4*kk}:{4*kk+3}], v{V_L16}, s[{S_WS}:{S_WS+3}], s{s_src} offen offset:{(kk%4)*1024} sc1")
    NF = 4 * NK

    def rd(f):
        off = f * 1024
        r = WR + 4 * (f % 8)
        if off >= 65536:
            A(f"ds_read_b128 v[{r}:{r+3}], v{V_L16B} offset:{off-65536}")
        else:
            A(f"ds_read_b128 v[{r}:{r+3}], v{V_L16} offset:{off}")
    for f in range(8):
        rd(f)
    for f in range(NF):
        kk, t = f >> 2, f & 3
        lg = min(7, NF - 1 - f)
        if t == 0:
            A(f"s_waitcnt vmcnt({NK-1-kk}) lgkmcnt({lg})")
        else:
            A(f"s_waitcnt lgkmcnt({lg})")
        w = vr(WR + 4 * (f % 8), 4)
        x = ar(4 * kk, 4)
        d = vr(ACC + 16 * t, 16)
        c = "0" if kk == 0 else d
        if swap:
            A(f"v_mfma_f32_32x32x16_bf16 {d}, {x}, {w}, {c}")
        else:
            A(f"v_mfma_f32_32x32x16_bf16 {d}, {w}, {x}, {c}")
        if f + 8 < NF:
            rd(f + 8)
    A("s_nop 15")


def pack_units(A, src, dst, ntiles=4):
    for t in range(ntiles):
        for i in range(8):
            A(f"v_cvt_pk_bf16_f32 v{dst + 8*t + i}, v{src + 16*t + 2*i}, v{src + 16*t + 2*i + 1}")


def store_units(A, src, n, s_dst):
    for u in range(n):
        if u % 4 == 0 and u:
            A(f"s_add_u32 s{s_dst}, s{s_dst}, 4096")
        A(f"buffer_store_dwordx4 v[{src+4*u}:{src+4*u+3}], v{V_L16}, s[{S_WS}:{S_WS+3}], s{s_dst} offen offset:{(u%4)*1024} sc1")


def seg_loop_begin(A, name):
    A(f"""v_add_u32 v{V_L16B}, 0x10000, v{V_L16}
    s_mov_b32 s{S_SEG}, s{S_WAVE}""")
    A.label(name)


def seg_loop_end(A, name, flag_base_words=None, per_wave=32):
    if flag_base_words is not None:
        A(f"""s_mul_i32 s{S_T0+4}, s{S_WAVE}, {per_wave*4}
        s_lshl_b32 s{S_T0+5}, s{S_INST}, 2
        s_add_u32 s{S_T0+4}, s{S_T0+4}, s{S_T0+5}
        s_add_u32 s{S_T0+4}, s{S_T0+4}, {FLG + flag_base_words*4}
        s_lshr_b32 s{S_T0+5}, s{S_SEG}, 2
        s_add_u32 s{S_T0+5}, s{S_T0+5}, 1""")
        signal_word(A, S_T0 + 4, S_T0 + 5, 4, 5)
    A(f"""s_add_u32 s{S_SEG}, s{S_SEG}, 4
    s_cmp_lt_u32 s{S_SEG}, 64
    s_cbranch_scc1 {name}
    s_waitcnt vmcnt(0)
    s_endpgm""")


def wait_ln(A):
    A(f"""s_lshr_b32 s{S_T0+4}, s{S_SEG}, 1
    s_lshl_b32 s{S_T0+4}, s{S_T0+4}, 2
    s_add_u32 s{S_T0+4}, s{S_T0+4}, {DB_LN*4}
    s_mov_b32 s{S_T0+5}, 7
    v_mov_b32 v4, 0""")
    wait_words(A, S_DBG, 4, f"s{S_T0+4}", 1, S_T0 + 5, 5)


def wait_prog(A, flag_base_words, per_wave, s_first_inst, nlanes, stride_words=1):
    A(f"""s_and_b32 s{S_T0+4}, s{S_SEG}, 3
    s_mul_i32 s{S_T0+4}, s{S_T0+4}, {per_wave*4}
    s_lshl_b32 s{S_T0+5}, s{s_first_inst}, 2
    s_add_u32 s{S_T0+4}, s{S_T0+4}, s{S_T0+5}
    s_add_u32 s{S_T0+4}, s{S_T0+4}, {FLG + flag_base_words*4}
    s_lshr_b32 s{S_T0+5}, s{S_SEG}, 2
    v_min_u32 v4, {nlanes-1}, v{V_LANE}
    v_mul_u32_u24 v4, {4*stride_words}, v4""")
    wait_words(A, S_WS, 4, f"s{S_T0+4}", nlanes, S_T0 + 5, 5)


S_SRC = 60
S_DST = 61
S_BASE = 62


def role_kv(A, isv):
    nm = "V" if isv else "K"
    A.label(f"ROLE_{nm}")
    make_srd(A, S_A, P_WV if isv else P_WK, 512 * 8192)
    A(f"s_lshl_b32 s{S_BASE}, s{S_INST}, 8")
    wload(A, 8192, 32, S_BASE)
    lp = f"LOOP_{nm}"
    seg_loop_begin(A, lp)
    wait_ln(A)
    A(f"s_lshl_b32 s{S_SRC}, s{S_SEG}, 15\ns_add_u32 s{S_SRC}, s{S_SRC}, {XN}")
    gemm_seg(A, 32, S_SRC, swap=isv)
    pack_units(A, ACC, 160)
    A(f"""s_lshl_b32 s{S_DST}, s{S_INST}, 6
    s_add_u32 s{S_DST}, s{S_DST}, s{S_SEG}
    s_lshl_b32 s{S_DST}, s{S_DST}, 13
    s_add_u32 s{S_DST}, s{S_DST}, {VB if isv else KB}""")
    store_units(A, 160, 8, S_DST)
    seg_loop_end(A, lp, FL_V if isv else FL_K)


def role_gu(A):
    A.label("ROLE_GU")
    make_srd(A, S_A, P_WG, 512 * 3584)
    make_srd(A, S_B, P_WU, 512 * 3584)
    A(f"s_lshl_b32 s{S_BASE}, s{S_INST}, 7")
    wload(A, 3584, 32, S_BASE, two=True)
    c1 = -2.0 * math.sqrt(2.0 / math.pi) * math.log2(math.e)
    c2 = c1 * 0.044715
    A(f"s_mov_b32 s{S_MASK}, {f32(c1)}\ns_mov_b32 s{S_MASK+1}, {f32(c2)}")
    lp = "LOOP_GU"
    seg_loop_begin(A, lp)
    wait_ln(A)
    A(f"s_lshl_b32 s{S_SRC}, s{S_SEG}, 15\ns_add_u32 s{S_SRC}, s{S_SRC}, {XN}")
    gemm_seg(A, 32, S_SRC)
    A(f"v_mov_b32 v6, s{S_MASK}")
    for blk in range(4):
        g0 = ACC + 8 * blk
        u0 = ACC + 32 + 8 * blk
        T = 160
        for i in range(8):
            A(f"v_mul_f32 v{T+i}, v{g0+i}, v{g0+i}")
        for i in range(8):
            A(f"v_fma_f32 v{T+i}, v{T+i}, s{S_MASK+1}, v6")
        for i in range(8):
            A(f"v_mul_f32 v{T+i}, v{T+i}, v{g0+i}")
        for i in range(8):
            A(f"v_exp_f32 v{T+i}, v{T+i}")
        for i in range(8):
            A(f"v_mul_f32 v{g0+i}, v{g0+i}, v{u0+i}")
        for i in range(8):
            A(f"v_add_f32 v{T+i}, 1.0, v{T+i}")
        for i in range(8):
            A(f"v_rcp_f32 v{T+i}, v{T+i}")
        A("s_nop 0")
        for i in range(8):
            A(f"v_mul_f32 v{g0+i}, v{g0+i}, v{T+i}")
    pack_units(A, ACC, 160, ntiles=2)
    A(f"""s_mul_i32 s{S_DST}, s{S_SEG}, {112*1024}
    s_lshl_b32 s{S_T0}, s{S_INST}, 12
    s_add_u32 s{S_DST}, s{S_DST}, s{S_T0}
    s_add_u32 s{S_DST}, s{S_DST}, {HB}""")
    store_units(A, 160, 4, S_DST)
    seg_loop_end(A, lp, FL_H)


def role_part(A, down):
    nm = "DOWN" if down else "WO"
    NK = 28 if down else 32
    A.label(f"ROLE_{nm}")
    make_srd(A, S_A, P_WD if down else P_WO, (1792 if down else 4096) * 1024)
    S_KQ, S_NQ, S_SL = S_MASK, S_MASK + 1, S_MASK + 2
    A(f"""s_lshr_b32 s{S_KQ}, s{S_INST}, 2
    s_and_b32 s{S_NQ}, s{S_INST}, 3
    s_mul_i32 s{S_BASE}, s{S_KQ}, {NK*16*1024}
    s_lshl_b32 s{S_T0}, s{S_NQ}, 8
    s_add_u32 s{S_BASE}, s{S_BASE}, s{S_T0}
    s_add_u32 s{S_SL}, s{S_KQ}, {8 if down else 0}
    s_mul_i32 s{S_INST}, s{S_NQ}, 12
    s_add_u32 s{S_INST}, s{S_INST}, s{S_SL}""")
    wload(A, 1024, NK, S_BASE)
    lp = f"LOOP_{nm}"
    seg_loop_begin(A, lp)
    if down:
        A(f"s_mul_i32 s{S_MASK+3}, s{S_KQ}, 7")
        wait_prog(A, FL_H, 32, S_MASK + 3, 7)
        A(f"""s_mul_i32 s{S_SRC}, s{S_SEG}, {112*1024}
        s_mul_i32 s{S_T0}, s{S_KQ}, {28*1024}
        s_add_u32 s{S_SRC}, s{S_SRC}, s{S_T0}
        s_add_u32 s{S_SRC}, s{S_SRC}, {HB}""")
    else:
        A(f"s_lshl_b32 s{S_MASK+3}, s{S_KQ}, 2")
        wait_prog(A, FL_O, 32, S_MASK + 3, 4)
        A(f"""s_lshl_b32 s{S_SRC}, s{S_SEG}, 18
        s_lshl_b32 s{S_T0}, s{S_KQ}, 15
        s_add_u32 s{S_SRC}, s{S_SRC}, s{S_T0}
        s_add_u32 s{S_SRC}, s{S_SRC}, {OB}""")
    gemm_seg(A, NK, S_SRC)
    A(f"""s_lshl_b32 s{S_DST}, s{S_SL}, 6
    s_add_u32 s{S_DST}, s{S_DST}, s{S_SEG}
    s_lshl_b32 s{S_DST}, s{S_DST}, 16
    s_lshl_b32 s{S_T0}, s{S_NQ}, 14
    s_add_u32 s{S_DST}, s{S_DST}, s{S_T0}
    s_add_u32 s{S_DST}, s{S_DST}, {PART}""")
    store_units(A, ACC, 16, S_DST)
    seg_loop_end(A, lp, FL_P, per_wave=64)


def role_qatt(A):
    A.label("ROLE_QA")
    make_srd(A, S_A, P_WQ, 512 * 8192)
    A(f"s_lshl_b32 s{S_BASE}, s{S_INST}, 8")
    wload(A, 8192, 32, S_BASE)
    A(f"""v_and_b32 v4, 31, v{V_LANE}
    v_lshrrev_b32 v5, 5, v{V_LANE}
    v_lshlrev_b32 v5, 2, v5
    v_sub_u32 v4, v4, v5""")
    for r in range(16):
        A(f"v_cmp_le_i32 s[{S_MASK+2*r}:{S_MASK+2*r+1}], {(r&3) + 8*(r>>2)}, v4")
    V_KMA, V_VMA = 6, 7
    A(f"""v_and_b32 v{V_KMA}, 7, v{V_LANE}
    v_lshlrev_b32 v{V_KMA}, 4, v{V_KMA}
    v_lshrrev_b32 v5, 5, v{V_LANE}
    v_lshl_add_u32 v{V_KMA}, v5, 7, v{V_KMA}
    v_lshlrev_b32 v{V_VMA}, 3, v{V_LANE}""")
    lp = "LOOP_QA"
    seg_loop_begin(A, lp)
    wait_ln(A)
    A(f"s_lshl_b32 s{S_SRC}, s{S_SEG}, 15\ns_add_u32 s{S_SRC}, s{S_SRC}, {XN}")
    gemm_seg(A, 32, S_SRC)
    QF = 160
    pack_units(A, ACC, QF)
    wait_prog(A, FL_K, 32, S_INST, 2, stride_words=128)
    A(f"""s_lshl_b32 s{S_SRC}, s{S_INST}, 6
    s_add_u32 s{S_SRC}, s{S_SRC}, s{S_SEG}
    s_lshl_b32 s{S_DST}, s{S_SRC}, 13
    s_add_u32 s{S_T0}, s{S_DST}, {KB}
    s_add_u32 s{S_T0+1}, s{S_DST}, {KB+4096}
    s_add_u32 s{S_T0+2}, s{S_DST}, {VB}
    s_add_u32 s{S_T0+3}, s{S_DST}, {VB+4096}""")
    for u in range(16):
        A(f"buffer_load_dwordx4 a[{128+4*u}:{131+4*u}], v{V_L16}, s[{S_WS}:{S_WS+3}], s{S_T0 + u//4} offen offset:{(u%4)*1024} sc1")
    SX, SM = 64, 80
    for ks in range(8):
        A(f"s_waitcnt vmcnt({15-ks})")
        A(f"v_mfma_f32_32x32x16_bf16 v[{SX}:{SX+15}], a[{128+4*ks}:{131+4*ks}], v[{QF+4*ks}:{QF+4*ks+3}], {'0' if ks == 0 else vr(SX,16)}")
    A(f"""s_lshl_b32 s{S_T0+4}, s{S_INST}, 2
    s_add_u32 s{S_T0+4}, s{S_T0+4}, {FLG + FL_T*4}
    v_mov_b32 v4, 0""")
    wait_words(A, S_WS, 4, f"s{S_T0+4}", 1, S_SEG, 5)
    A(f"""s_lshl_b32 s{S_DST}, s{S_SRC}, 11
    s_add_u32 s{S_T0}, s{S_DST}, {KM}
    s_add_u32 s{S_T0+1}, s{S_DST}, {VM}""")
    KMF = 192
    VMF = 224
    for ks in range(8):
        A(f"buffer_load_dwordx4 v[{KMF+4*ks}:{KMF+4*ks+3}], v{V_KMA}, s[{S_WS}:{S_WS+3}], s{S_T0} offen offset:{ks*256} sc1")
    for et in range(4):
        A(f"buffer_load_dwordx2 v[{VMF+4*et}:{VMF+4*et+1}], v{V_VMA}, s[{S_WS}:{S_WS+3}], s{S_T0+1} offen offset:{et*512} sc1")
        A(f"v_mov_b32 v{VMF+4*et+2}, 0\nv_mov_b32 v{VMF+4*et+3}, 0")
    A(f"v_mov_b32 v8, {f32(-1e30)}")
    for r in range(16):
        A(f"v_cndmask_b32 v{SX+r}, v8, v{SX+r}, s[{S_MASK+2*r}:{S_MASK+2*r+1}]")
    A(f"v_max3_f32 v9, v{SX}, v{SX+1}, v{SX+2}")
    for r in range(3, 15, 2):
        A(f"v_max3_f32 v9, v9, v{SX+r}, v{SX+r+1}")
    A(f"v_max_f32 v9, v9, v{SX+15}")
    for ks in range(8):
        A(f"s_waitcnt vmcnt({11-ks})")
        A(f"v_mfma_f32_32x32x16_bf16 v[{SM}:{SM+15}], v[{KMF+4*ks}:{KMF+4*ks+3}], v[{QF+4*ks}:{QF+4*ks+3}], {'0' if ks == 0 else vr(SM,16)}")
    A("s_nop 15")
    cs = (128 ** -0.5) * math.log2(math.e)
    A(f"""v_max3_f32 v9, v9, v{SM}, v{SM+1}
    v_max3_f32 v9, v9, v{SM+2}, v{SM+3}
    v_mov_b32 v10, v9
    s_nop 1
    v_permlane32_swap_b32 v9, v10
    s_nop 1
    v_max_f32 v9, v9, v10
    s_mov_b32 s{S_T0+6}, {f32(cs)}
    v_mul_f32 v9, {f32(-cs)}, v9""")
    vals = [SX + r for r in range(16)] + [SM + r for r in range(4)]
    for v in vals:
        A(f"v_fma_f32 v{v}, v{v}, s{S_T0+6}, v9")
    for v in vals:
        A(f"v_exp_f32 v{v}, v{v}")
    A("s_nop 0")
    A(f"v_add_f32 v10, v{vals[0]}, v{vals[1]}\nv_add_f32 v11, v{vals[2]}, v{vals[3]}")
    for i in range(4, 20, 2):
        A(f"v_add_f32 v10, v10, v{vals[i]}\nv_add_f32 v11, v11, v{vals[i+1]}")
    A("""v_add_f32 v10, v10, v11
    v_mov_b32 v11, v10
    s_nop 1
    v_permlane32_swap_b32 v10, v11
    s_nop 1
    v_add_f32 v10, v10, v11
    v_rcp_f32 v10, v10
    s_nop 0""")
    for v in vals:
        A(f"v_mul_f32 v{v}, v{v}, v10")
    PX, PM = 12, 20
    for i in range(8):
        A(f"v_cvt_pk_bf16_f32 v{PX+i}, v{SX+2*i}, v{SX+2*i+1}")
    A(f"""v_cvt_pk_bf16_f32 v{PM}, v{SM}, v{SM+1}
    v_cvt_pk_bf16_f32 v{PM+1}, v{SM+2}, v{SM+3}
    v_mov_b32 v{PM+2}, 0
    v_mov_b32 v{PM+3}, 0
    s_waitcnt vmcnt(0)
    s_nop 1""")
    for et in range(4):
        d = vr(ACC + 16 * et, 16)
        A(f"v_mfma_f32_32x32x16_bf16 {d}, a[{160+8*et}:{163+8*et}], v[{PX}:{PX+3}], 0")
    for et in range(4):
        d = vr(ACC + 16 * et, 16)
        A(f"v_mfma_f32_32x32x16_bf16 {d}, a[{164+8*et}:{167+8*et}], v[{PX+4}:{PX+7}], {d}")
    for et in range(4):
        d = vr(ACC + 16 * et, 16)
        A(f"v_mfma_f32_32x32x16_bf16 {d}, v[{VMF+4*et}:{VMF+4*et+3}], v[{PM}:{PM+3}], {d}")
    A("s_nop 15")
    pack_units(A, ACC, 160)
    A(f"""s_lshl_b32 s{S_DST}, s{S_SEG}, 5
    s_add_u32 s{S_DST}, s{S_DST}, s{S_INST}
    s_lshl_b32 s{S_DST}, s{S_DST}, 13
    s_add_u32 s{S_DST}, s{S_DST}, {OB}""")
    store_units(A, 160, 8, S_DST)
    seg_loop_end(A, lp, FL_O)


def role_reduce(A, nwg):
    A.label("ROLE_RED")
    make_srd(A, S_A, P_X, 2048 * 1024)
    make_srd(A, S_B, P_OUT, 2048 * 1024)
    S_U, S_NT = S_MASK, S_MASK + 1
    A(f"""s_lshl_b32 s{S_U}, s{S_INST}, 2
    s_add_u32 s{S_U}, s{S_U}, s{S_WAVE}
    v_and_b32 v6, 31, v{V_LANE}
    v_lshlrev_b32 v6, 10, v6
    v_lshrrev_b32 v7, 5, v{V_LANE}
    v_lshl_add_u32 v6, v7, 4, v6""")
    lp = "LOOP_RED"
    A.label(lp)
    A(f"""s_lshr_b32 s{S_SEG}, s{S_U}, 4
    s_and_b32 s{S_NT}, s{S_U}, 15
    s_lshr_b32 s{S_MASK+2}, s{S_NT}, 2
    s_mul_i32 s{S_MASK+2}, s{S_MASK+2}, 12""")
    A(f"""s_lshl_b32 s{S_DST}, s{S_SEG}, 15
    s_lshl_b32 s{S_T0}, s{S_NT}, 6
    s_add_u32 s{S_DST}, s{S_DST}, s{S_T0}
    buffer_load_dwordx4 v[8:11], v6, s[{S_A}:{S_A+3}], s{S_DST} offen
    buffer_load_dwordx4 v[12:15], v6, s[{S_A}:{S_A+3}], s{S_DST} offen offset:32""")
    wait_prog(A, FL_P, 64, S_MASK + 2, 12)
    A(f"""s_lshl_b32 s{S_SRC}, s{S_U}, 12
    s_add_u32 s{S_SRC}, s{S_SRC}, {PART}""")
    B = 32
    for sl in range(12):
        for q in range(4):
            r = B + 16 * sl + 4 * q
            A(f"buffer_load_dwordx4 v[{r}:{r+3}], v{V_L16}, s[{S_WS}:{S_WS+3}], s{S_SRC} offen offset:{q*1024} sc1")
        if sl < 11:
            A(f"s_add_u32 s{S_SRC}, s{S_SRC}, {1<<22}")
    for sl in range(1, 8):
        A(f"s_waitcnt vmcnt({4*(11-sl)})")
        for i in range(16):
            A(f"v_add_f32 v{B+i}, v{B+i}, v{B+16*sl+i}")
    for sl in range(9, 12):
        A(f"s_waitcnt vmcnt({4*(11-sl)})")
        for i in range(16):
            A(f"v_add_f32 v{B+128+i}, v{B+128+i}, v{B+16*sl+i}")
    for i in range(8):
        A(f"v_cvt_pk_bf16_f32 v{B+16+i}, v{B+2*i}, v{B+2*i+1}")
        A(f"v_cvt_pk_bf16_f32 v{B+24+i}, v{B+128+2*i}, v{B+128+2*i+1}")
    A("s_nop 1")
    for base in (B + 16, B + 24):
        for p in range(2):
            A(f"v_permlane32_swap_b32 v{base+4*p}, v{base+4*p+2}")
            A(f"v_permlane32_swap_b32 v{base+4*p+1}, v{base+4*p+3}")
    A("s_waitcnt vmcnt(0)\ns_nop 1")
    T = B + 48
    for i in range(8):
        a, b, x = B + 16 + i, B + 24 + i, 8 + i
        A(f"""v_lshlrev_b32 v{T}, 16, v{a}
        v_and_b32 v{T+1}, 0xffff0000, v{a}
        v_lshlrev_b32 v{T+2}, 16, v{x}
        v_and_b32 v{T+3}, 0xffff0000, v{x}
        v_add_f32 v{T}, v{T}, v{T+2}
        v_add_f32 v{T+1}, v{T+1}, v{T+3}
        v_cvt_pk_bf16_f32 v{T}, v{T}, v{T+1}
        v_lshlrev_b32 v{T+2}, 16, v{b}
        v_and_b32 v{T+3}, 0xffff0000, v{b}
        v_and_b32 v{T+1}, 0xffff0000, v{T}
        v_lshlrev_b32 v{T}, 16, v{T}
        v_add_f32 v{T}, v{T}, v{T+2}
        v_add_f32 v{T+1}, v{T+1}, v{T+3}
        v_cvt_pk_bf16_f32 v{16+i}, v{T}, v{T+1}""")
    A(f"""buffer_store_dwordx4 v[16:19], v6, s[{S_B}:{S_B+3}], s{S_DST} offen
    buffer_store_dwordx4 v[20:23], v6, s[{S_B}:{S_B+3}], s{S_DST} offen offset:32
    s_add_u32 s{S_U}, s{S_U}, {4*nwg}
    s_cmp_lt_u32 s{S_U}, 1024
    s_cbranch_scc1 {lp}
    s_waitcnt vmcnt(0)
    s_endpgm""")
```

```python
from asmlib import *
from roles import *
import math

L_W = 0x00000
L_KV = 0x1E000
L_QX = 0x26000
L_KX = 0x26800
L_OX = 0x27000
L_MISC = 0x27800
LDS_BYTES = 0x28000

V_IDX = 3
V_RD = 4
V_WR = 5
V_PUB = 6
V_XW = 7
V_QR = 8
V_KXR = 9
V_VXR = 10
V_OW = 11
V_WL = 12
V_FLG = 13
V_VM0 = 14
MEMF = 16
AQK = 48
AV = 64
T = 72
VT0 = 120

TSLOT = 128 * 2048

S_STEP = 51
S_RANK = 49
S_SLOT = 66
S_MEMO = 67
S_KVO = 68
S_NEG1 = 69
S_CS = 70
S_M32 = 72
S_MPUB = 74
S_MLO8 = 76
S_KVSRC = 78
S_PUBK = 79
S_PUBV = 80
S_TFL = 81
S_TIME = 84

TEAM_SPIN = 1 << 17


def qk_loc(c, t):
    i = 4 * c + t
    if i < 6:
        return ("L", i)
    return ("R", 256 + 8 * (i - 6))


def v_loc(c, ab):
    i = 2 * c + ab
    if i < 6:
        return ("R", 256 + 8 * (26 + i))
    return ("R", VT0 + 8 * (i - 6))


WO_ORDER = [(c2, t) for t in (0, 4, 1, 5, 2, 6, 3, 7) for c2 in (0, 1)]


def o_loc(c2, t):
    i = WO_ORDER.index((c2, t))
    if i < 7:
        return ("R", VT0 + 80 + 8 * i)
    return ("L", 6 + (i - 7))


def team_load_weights(A):
    A(f"""s_cmp_lt_u32 s{S_WAVE}, 2
    s_cselect_b32 s{S_A}, s{P_WQ}, s{P_WK}
    s_cselect_b32 s{S_A+1}, s{P_WQ+1}, s{P_WK+1}
    s_mov_b32 s{S_A+2}, {512*8192}
    s_mov_b32 s{S_A+3}, 0x00020000""")
    make_srd(A, S_B, P_WV, 512 * 8192)
    S_C = 88
    make_srd(A, S_C, P_WO, 4096 * 1024)
    vq, vv, vo, vrow, vi, vw = 4, 5, 6, 7, 8, 9
    A(f"""v_and_b32 v{vi}, 15, v{V_LANE}
    v_lshrrev_b32 v{vrow}, 5, v{V_LANE}
    v_lshlrev_b32 v{vrow}, 4, v{vrow}
    v_bfe_u32 v10, v{V_LANE}, 4, 1
    v_lshl_add_u32 v{vrow}, v10, 2, v{vrow}
    v_lshlrev_b32 v{vq}, 13, v{vrow}
    v_lshl_add_u32 v{vv}, v{vi}, 2, v{vq}
    v_lshl_add_u32 v{vq}, v{vi}, 3, v{vq}
    v_lshlrev_b32 v{vo}, 10, v{vrow}
    v_lshl_add_u32 v{vo}, v{vi}, 4, v{vo}
    s_lshl_b32 s{S_T0}, s{S_WAVE}, 11
    v_add_u32 v{vw}, s{S_T0}, v{V_L16}
    v_add_u32 v10, 0x10000, v{vw}
    s_lshl_b32 s{S_T0}, s{S_RANK}, 8
    s_and_b32 s{S_T0+1}, s{S_WAVE}, 1
    s_lshl_b32 s{S_T0+1}, s{S_T0+1}, 7
    s_add_u32 s{S_T0+1}, s{S_T0+1}, s{S_T0}
    s_lshl_b32 s{S_T0+2}, s{S_WAVE}, 6
    s_add_u32 s{S_T0+2}, s{S_T0+2}, s{S_T0}
    s_lshl_b32 s{S_T0+3}, s{S_RANK}, 17
    s_lshl_b32 s{S_T0+4}, s{S_WAVE}, 8
    s_add_u32 s{S_T0+3}, s{S_T0+3}, s{S_T0+4}""")
    TMP = 12
    batches = []

    def rows16():
        return [(hf, half, j) for hf in range(2) for half in range(2) for j in range(4)]

    def put(loc, rho4, hf, srcs):
        kind, idx = loc
        if kind == "R" and idx < 256:
            for q, (rb, ra, sel) in enumerate(srcs):
                A(f"v_perm_b32 v{idx+4*hf+q}, v{rb}, v{ra}, s{sel}")
        elif kind == "R":
            for q, (rb, ra, sel) in enumerate(srcs):
                A(f"v_perm_b32 v{TMP+q}, v{rb}, v{ra}, s{sel}")
            for q in range(4):
                A(f"v_accvgpr_write_b32 a{idx-256+4*hf+q}, v{TMP+q}")
        else:
            for q, (rb, ra, sel) in enumerate(srcs):
                A(f"v_perm_b32 v{TMP+q}, v{rb}, v{ra}, s{sel}")
            off = L_W + idx * 8192 + hf * 1024
            if off >= 65536:
                A(f"ds_write_b128 v10, v[{TMP}:{TMP+3}] offset:{off-65536}")
            else:
                A(f"ds_write_b128 v{vw}, v[{TMP}:{TMP+3}] offset:{off}")
            A("s_waitcnt lgkmcnt(0)")

    def mk(kind, c, hfs):
        width = {"qk": 2, "v": 1, "o": 4}[kind]
        srd = {"qk": S_A, "v": S_B, "o": S_C}[kind]
        vof = {"qk": vq, "v": vv, "o": vo}[kind]
        sb = {"qk": S_T0 + 1, "v": S_T0 + 2, "o": S_T0 + 3}[kind]
        RS = 1024 if kind == "o" else 8192
        rows = [r for r in rows16() if r[0] in hfs]
        sfx = {1: "dword", 2: "dwordx2", 4: "dwordx4"}[width]

        def issue(st):
            for n, (hf, half, j) in enumerate(rows):
                row = 64 * c + 32 * hf + 8 * half + j
                A(f"s_add_u32 s{S_T0+5}, s{sb}, {row*RS}")
                A(f"buffer_load_{sfx} {vr(st+width*n, width)}, v{vof}, s[{srd}:{srd+3}], s{S_T0+5} offen")

        def process(st):
            ntile = 2 * width
            for t in range(ntile):
                loc = {"qk": qk_loc, "v": v_loc, "o": o_loc}[kind](c, t)
                for hf in hfs:
                    srcs = []
                    for q in range(4):
                        half, j0 = q & 1, 2 * (q >> 1)
                        na = rows.index((hf, half, j0))
                        nb = rows.index((hf, half, j0 + 1))
                        ra = st + width * na + (t >> 1)
                        rb = st + width * nb + (t >> 1)
                        srcs.append((rb, ra, S_PSEL_HI if (t & 1) else S_PSEL_LO))
                    put(loc, None, hf, srcs)
        return (width * len(rows), len(rows), issue, process)

    for c in range(2):
        for hf in range(2):
            batches.append(mk("o", c, [hf]))
    for c in range(8):
        batches.append(mk("qk", c, [0, 1]))
        batches.append(mk("v", c, [0, 1]))
    POOL0, POOL1 = 16, 120
    inflight = []
    ptr = POOL0
    nxt = 0

    def can_issue(b):
        nonlocal ptr
        n = b[0]
        if sum(x[2] for x in inflight) + b[1] > 60:
            return None
        st = ptr if ptr + n <= POOL1 else POOL0
        for (_, s0, _, sz) in [(x[0], x[1], x[2], x[0][0]) for x in inflight]:
            if st < s0 + sz and s0 < st + n:
                return None
        return st
    while nxt < len(batches) or inflight:
        while nxt < len(batches):
            st = can_issue(batches[nxt])
            if st is None:
                break
            batches[nxt][2](st)
            inflight.append((batches[nxt], st, batches[nxt][1]))
            ptr = st + batches[nxt][0]
            nxt += 1
        b, st, nl = inflight.pop(0)
        A(f"s_waitcnt vmcnt({sum(x[2] for x in inflight)})")
        b[3](st)


def ld_tile(A, slot, dst):
    for hf in range(2):
        off = L_W + slot * 8192 + hf * 1024
        if off >= 65536:
            A(f"ds_read_b128 v[{dst+4*hf}:{dst+4*hf+3}], v{V_WL+0} offset:{off-65536+0} ;HI")
        else:
            A(f"ds_read_b128 v[{dst+4*hf}:{dst+4*hf+3}], v{V_WL} offset:{off}")


def role_team(A, timing=False):
    A.label("ROLE_TEAM")
    team_load_weights(A)
    l = V_LANE
    A(f"""v_bfe_u32 v16, v{l}, 3, 1
    v_mov_b32 v17, 0x4444
    v_mov_b32 v18, 0xeeee
    v_cmp_eq_u32 vcc, 1, v16
    s_nop 1
    v_cndmask_b32 v{V_IDX}, v17, v18, vcc
    s_mov_b32 s{S_NEG1}, -1
    s_mov_b32 s{S_CS}, {f32((128 ** -0.5) * math.log2(math.e))}
    s_mov_b32 s{S_M32}, -1
    s_mov_b32 s{S_M32+1}, 0
    s_mov_b32 s{S_MPUB}, 0x000f000f
    s_mov_b32 s{S_MPUB+1}, 0x000f000f
    s_mov_b32 s{S_MLO8}, 0x00ff00ff
    s_mov_b32 s{S_MLO8+1}, 0x00ff00ff""")
    A(f"""s_lshl_b32 s{S_T0}, s{S_RANK}, 2
    s_add_u32 s{S_T0}, s{S_T0}, s{S_WAVE}
    s_lshl_b32 s{S_T0+1}, s{S_T0}, 11
    s_add_u32 s{S_T0+1}, s{S_T0+1}, {TP}
    v_add_u32 v{V_RD}, s{S_T0+1}, v{V_L16}""")
    A(f"""v_lshrrev_b32 v16, 2, v{l}
    v_lshlrev_b32 v16, 11, v16
    v_and_b32 v17, 3, v{l}
    v_lshl_add_u32 v16, v17, 4, v16
    s_lshl_b32 s{S_T0+1}, s{S_WAVE}, 16
    s_lshl_b32 s{S_T0+2}, s{S_RANK}, 6
    s_add_u32 s{S_T0+1}, s{S_T0+1}, s{S_T0+2}
    s_add_u32 s{S_T0+1}, s{S_T0+1}, {TP}
    v_add_u32 v{V_WR}, s{S_T0+1}, v16""")
    A(f"""s_and_b32 s{S_T0+1}, s{S_T0}, 15
    s_lshl_b32 s{S_T0+1}, s{S_T0+1}, 2
    v_and_b32 v16, 3, v{l}
    v_add_u32 v16, s{S_T0+1}, v16
    v_and_b32 v17, 15, v16
    s_lshr_b32 s{S_T0+2}, s{S_T0}, 5
    s_lshl_b32 s{S_T0+2}, s{S_T0+2}, 4
    v_add_u32 v17, s{S_T0+2}, v17
    v_lshlrev_b32 v17, 7, v17
    v_bfe_u32 v18, v16, 4, 1
    v_lshl_add_u32 v17, v18, 6, v17
    v_lshrrev_b32 v18, 5, v16
    v_lshl_add_u32 v17, v18, 3, v17
    v_lshrrev_b32 v18, 5, v{l}
    v_lshl_add_u32 v17, v18, 4, v17
    v_bfe_u32 v18, v{l}, 4, 1
    v_lshl_add_u32 v17, v18, 2, v17
    s_bfe_u32 s{S_T0+2}, s{S_T0}, 0x10004
    s_lshl_b32 s{S_T0+2}, s{S_T0+2}, 5
    v_add_u32 v{V_PUB}, s{S_T0+2}, v17""")
    A(f"""v_bfe_u32 v16, v{l}, 2, 2
    v_lshlrev_b32 v16, 8, v16
    v_and_b32 v17, 1, v{l}
    v_lshl_add_u32 v16, v17, 7, v16
    v_bfe_u32 v17, v{l}, 1, 1
    v_lshl_add_u32 v16, v17, 3, v16
    v_bfe_u32 v17, v{l}, 4, 1
    v_lshl_add_u32 v16, v17, 6, v16
    v_lshrrev_b32 v17, 5, v{l}
    v_lshl_add_u32 v16, v17, 5, v16
    s_lshl_b32 s{S_T0+1}, s{S_WAVE}, 10
    s_add_u32 s{S_T0+1}, s{S_T0+1}, {L_QX}
    v_add_u32 v{V_XW}, s{S_T0+1}, v16""")
    A(f"""v_lshrrev_b32 v16, 4, v{l}
    v_lshlrev_b32 v17, 7, v16
    v_and_b32 v18, 7, v{l}
    v_lshl_add_u32 v17, v18, 4, v17
    v_add_u32 v{V_QR}, {L_QX}, v17""")
    A(f"""v_lshlrev_b32 v17, 9, v16
    v_bfe_u32 v18, v{l}, 3, 1
    v_lshl_add_u32 v17, v18, 8, v17
    v_bfe_u32 v18, v{l}, 2, 1
    v_lshl_add_u32 v17, v18, 6, v17
    v_and_b32 v18, 3, v{l}
    v_lshl_add_u32 v{V_KXR}, v18, 4, v17""")
    A(f"""v_lshlrev_b32 v17, 9, v16
    v_and_b32 v18, 15, v{l}
    v_lshl_add_u32 v17, v18, 5, v17
    s_lshl_b32 s{S_T0+1}, s{S_WAVE}, 11
    s_add_u32 s{S_T0+1}, s{S_T0+1}, 8192
    v_add_u32 v{V_VXR}, s{S_T0+1}, v17""")
    A(f"""v_lshlrev_b32 v17, 7, v16
    v_and_b32 v18, 7, v{l}
    v_lshl_add_u32 v17, v18, 4, v17
    s_lshl_b32 s{S_T0+1}, s{S_WAVE}, 9
    s_add_u32 s{S_T0+1}, s{S_T0+1}, {L_OX}
    v_add_u32 v{V_OW}, s{S_T0+1}, v17
    s_lshl_b32 s{S_T0+1}, s{S_WAVE}, 11
    v_add_u32 v{V_WL}, s{S_T0+1}, v{V_L16}""")
    A(f"""s_lshl_b32 s{S_KVSRC}, s{S_RANK}, 19
    s_and_b32 s{S_T0+1}, s{S_WAVE}, 1
    s_lshl_b32 s{S_T0+1}, s{S_T0+1}, 12
    s_add_u32 s{S_KVSRC}, s{S_KVSRC}, s{S_T0+1}
    s_lshr_b32 s{S_T0+1}, s{S_WAVE}, 1
    s_mul_i32 s{S_T0+1}, s{S_T0+1}, {VB-KB}
    s_add_u32 s{S_KVSRC}, s{S_KVSRC}, s{S_T0+1}
    s_add_u32 s{S_KVSRC}, s{S_KVSRC}, {KB}
    s_lshl_b32 s{S_PUBK}, s{S_RANK}, 17
    s_add_u32 s{S_PUBV}, s{S_PUBK}, {VM}
    s_add_u32 s{S_PUBK}, s{S_PUBK}, {KM}
    s_lshl_b32 s{S_TFL}, s{S_RANK}, 2
    s_add_u32 s{S_TFL}, s{S_TFL}, {FLG + FL_T*4}""")
    A("v_mov_b32 v16, -1\nv_mov_b32 v17, -1\nv_mov_b32 v18, -1\nv_mov_b32 v19, -1")
    A(f"s_mov_b32 s{S_T0+1}, {TSLOT}")
    for q in range(2):
        A(f"buffer_store_dwordx4 v[16:19], v{V_RD}, s[{S_WS}:{S_WS+3}], 0 offen offset:{q*1024}")
        A(f"buffer_store_dwordx4 v[16:19], v{V_RD}, s[{S_WS}:{S_WS+3}], s{S_T0+1} offen offset:{q*1024}")
    A(f"""s_lshl_b32 s{S_T0+1}, s{S_T0}, 12
    s_add_u32 s{S_T0+1}, s{S_T0+1}, {MEMP}""")
    for q in range(4):
        A(f"buffer_store_dwordx4 v[16:19], v{V_L16}, s[{S_WS}:{S_WS+3}], s{S_T0+1} offen offset:{q*1024}")
    A("s_waitcnt vmcnt(0)\ns_barrier")
    sk = A.uniq("tbar")
    A(f"""s_cmp_lg_u32 s{S_WAVE}, 0
    s_cbranch_scc1 {sk}
    v_mov_b32 v16, {DB_TBAR*4}
    v_mov_b32 v17, 1
    s_mov_b64 exec, 1
    buffer_atomic_add v17, v16, s[{S_DBG}:{S_DBG+3}], 0 offen
    s_mov_b64 exec, -1
    s_mov_b32 s{S_T0}, 0""")
    lp = A.uniq("tbarp")
    A.label(lp)
    A(f"""buffer_load_dword v17, v16, s[{S_DBG}:{S_DBG+3}], 0 offen sc1
    s_add_u32 s{S_T0}, s{S_T0}, 1
    s_cmp_gt_u32 s{S_T0}, {SPIN_MAX}
    s_cbranch_scc1 {sk}
    s_waitcnt vmcnt(0)
    v_readfirstlane_b32 s{S_T0+1}, v17
    s_cmp_lt_u32 s{S_T0+1}, 32
    s_cbranch_scc1 {lp}""")
    A.label(sk)
    A("s_waitcnt vmcnt(0)\ns_barrier")

    def kv_wait(seg_sgpr):
        A(f"""s_and_b32 s{S_T0+4}, s{seg_sgpr}, 3
        s_lshl_b32 s{S_T0+4}, s{S_T0+4}, 7
        s_lshl_b32 s{S_T0+5}, s{S_RANK}, 2
        s_add_u32 s{S_T0+4}, s{S_T0+4}, s{S_T0+5}
        s_add_u32 s{S_T0+4}, s{S_T0+4}, {FLG + FL_K*4}
        s_lshr_b32 s{S_T0+5}, s{seg_sgpr}, 2
        v_min_u32 v{T}, 1, v{V_LANE}
        v_lshlrev_b32 v{T}, 9, v{T}""")
        wait_words(A, S_WS, T, f"s{S_T0+4}", 2, S_T0 + 5, T + 1)

    def kv_dma(seg_sgpr):
        A(f"""s_lshl_b32 s{S_T0+4}, s{seg_sgpr}, 13
        s_add_u32 s{S_T0+4}, s{S_T0+4}, s{S_KVSRC}
        s_and_b32 s{S_T0+5}, s{seg_sgpr}, 1
        s_lshl_b32 s{S_T0+5}, s{S_T0+5}, 14
        s_lshl_b32 s{S_T0+6}, s{S_WAVE}, 12
        s_add_u32 s{S_T0+5}, s{S_T0+5}, s{S_T0+6}
        s_add_u32 s{S_T0+5}, s{S_T0+5}, {L_KV}
        s_mov_b32 m0, s{S_T0+5}
        s_nop 0""")
        for q in range(4):
            A(f"buffer_load_dwordx4 v{V_L16}, s[{S_WS}:{S_WS+3}], s{S_T0+4} offen offset:{q*1024} sc1 lds")

    make_srd(A, S_A, P_MEM0, 8192)
    A(f"""v_and_b32 v{T}, 7, v{l}
    v_lshlrev_b32 v{T}, 10, v{T}
    v_bfe_u32 v{T+1}, v{l}, 3, 1
    v_lshl_add_u32 v{T}, v{T+1}, 4, v{T}
    v_lshrrev_b32 v{T+1}, 4, v{l}
    v_lshl_add_u32 v{T}, v{T+1}, 5, v{T}""")
    for c in range(8):
        A(f"buffer_load_dwordx4 v[{MEMF+4*c}:{MEMF+4*c+3}], v{T}, s[{S_A}:{S_A+3}], 0 offen offset:{c*128}")
    A(f"""s_mov_b32 s{S_STEP}, 0
    s_mov_b32 s{S_SLOT}, 0
    s_mov_b32 s{S_MEMO}, {MEMP}
    s_waitcnt vmcnt(0)""")
    kv_wait(S_STEP)
    kv_dma(S_STEP)
    A(f"v_add_u32 v{V_FLG}, 0x10000, v{V_WL}")
    A("s_waitcnt vmcnt(0)\ns_barrier")
    if timing:
        A(f"s_memtime s[{S_TIME}:{S_TIME+1}]\ns_waitcnt lgkmcnt(0)")

    def ldt(slot, dst):
        for hf in range(2):
            off = L_W + slot * 8192 + hf * 1024
            if off >= 65536:
                A(f"ds_read_b128 v[{dst+4*hf}:{dst+4*hf+3}], v{V_FLG} offset:{off-65536}")
            else:
                A(f"ds_read_b128 v[{dst+4*hf}:{dst+4*hf+3}], v{V_WL} offset:{off}")

    def smf(acc, afrag, breg):
        A(f"v_smfmac_f32_16x16x64_bf16 v[{acc}:{acc+3}], v[{afrag}:{afrag+3}], {xr(breg, 8)}, v{V_IDX}")

    A.label("TEAM_STEP")
    nokv = A.uniq("nokv")
    A(f"""s_add_u32 s{S_T0+7}, s{S_STEP}, 1
    s_cmp_ge_u32 s{S_T0+7}, 63
    s_cbranch_scc1 {nokv}""")
    kv_wait(S_T0 + 7)
    kv_dma(S_T0 + 7)
    A.label(nokv)
    for i in range(6):
        ldt(i, T + 8 * i)
    for r in range(24):
        A(f"v_mov_b32 v{AQK+r}, 0")
    A("s_waitcnt lgkmcnt(0)")
    for c in range(8):
        for t in range(4):
            kind, idx = qk_loc(c, t)
            smf(AQK + 4 * t, MEMF + 4 * c, (T + 8 * idx) if kind == "L" else idx)
    for c in range(8):
        for ab in range(2):
            smf(AV + 4 * ab, MEMF + 4 * c, v_loc(c, ab)[1])
    for t in range(4):
        b = AQK + 4 * t
        A(f"v_permlane32_swap_b32 v{b}, v{b+2}\nv_permlane32_swap_b32 v{b+1}, v{b+3}")
    A("s_nop 1")
    for t in range(4):
        b = AQK + 4 * t
        A(f"v_add_f32 v{b}, v{b}, v{b+2}\nv_add_f32 v{b+1}, v{b+1}, v{b+3}")
    for rr in range(2):
        A(f"v_cvt_pk_bf16_f32 v{T+2*rr}, v{AQK+rr}, v{AQK+4+rr}")
        A(f"v_cvt_pk_bf16_f32 v{T+2*rr+1}, v{AQK+8+rr}, v{AQK+12+rr}")
    A(f"ds_write_b64 v{V_XW}, v[{T}:{T+1}]\nds_write_b64 v{V_XW}, v[{T+2}:{T+3}] offset:16")
    A("s_nop 7")
    for r in range(4):
        A(f"v_permlane32_swap_b32 v{AV+r}, v{AV+4+r}")
    A("s_nop 1")
    for r in range(4):
        A(f"v_add_f32 v{AV+r}, v{AV+r}, v{AV+4+r}")
    A(f"v_cvt_pk_bf16_f32 v{V_VM0}, v{AV}, v{AV+1}\nv_cvt_pk_bf16_f32 v{V_VM0+1}, v{AV+2}, v{AV+3}")
    A("s_waitcnt lgkmcnt(0)\ns_barrier")
    A(f"""v_and_b32 v{T}, 15, v{l}
    v_lshlrev_b32 v{T}, 4, v{T}
    v_bfe_u32 v{T+1}, v{l}, 4, 1
    v_lshl_add_u32 v{T}, v{T+1}, 8, v{T}
    v_lshrrev_b32 v{T+1}, 5, v{l}
    v_lshl_add_u32 v{T}, v{T+1}, 3, v{T}
    s_lshl_b32 s{S_T0+4}, s{S_STEP}, 11
    s_lshl_b32 s{S_T0+5}, s{S_WAVE}, 9
    s_add_u32 s{S_T0+4}, s{S_T0+4}, s{S_T0+5}
    s_add_u32 s{S_T0+5}, s{S_T0+4}, s{S_PUBV}
    buffer_store_dwordx2 v[{V_VM0}:{V_VM0+1}], v{T}, s[{S_WS}:{S_WS+3}], s{S_T0+5} offen sc1
    v_lshlrev_b32 v{T}, 3, v{l}
    s_lshl_b32 s{S_T0+5}, s{S_WAVE}, 9
    v_add_u32 v{T+1}, s{S_T0+5}, v{T}
    v_add_u32 v{T+1}, {L_KX}, v{T+1}
    ds_read_b64 v[{T+2}:{T+3}], v{T+1}
    s_add_u32 s{S_T0+5}, s{S_T0+4}, s{S_PUBK}
    s_waitcnt lgkmcnt(0)
    buffer_store_dwordx2 v[{T+2}:{T+3}], v{T}, s[{S_WS}:{S_WS+3}], s{S_T0+5} offen sc1
    s_waitcnt vmcnt(0)
    s_barrier""")
    sk = A.uniq("tfl")
    A(f"""s_cmp_lg_u32 s{S_WAVE}, 0
    s_cbranch_scc1 {sk}
    s_add_u32 s{S_T0+5}, s{S_STEP}, 1""")
    signal_word(A, S_TFL, S_T0 + 5, T, T + 1)
    A.label(sk)
    A(f"""s_cmp_ge_u32 s{S_STEP}, 63
    s_cbranch_scc1 TEAM_DONE""")
    S0 = AQK
    A(f"""s_and_b32 s{S_KVO}, s{S_STEP}, 1
    s_lshl_b32 s{S_KVO}, s{S_KVO}, 14
    s_add_u32 s{S_KVO}, s{S_KVO}, {L_KV}
    v_add_u32 v{AQK+12}, s{S_KVO}, v{V_KXR}
    v_add_u32 v{AQK+13}, s{S_KVO}, v{V_VXR}""")
    QF, KMF, KXF = T, T + 16, MEMF
    for ks in range(4):
        A(f"ds_read_b128 v[{QF+4*ks}:{QF+4*ks+3}], v{V_QR} offset:{ks*512}")
        A(f"ds_read_b128 v[{KMF+4*ks}:{KMF+4*ks+3}], v{V_QR} offset:{2048+ks*512}")
        A(f"ds_read_b128 v[{KXF+8*ks}:{KXF+8*ks+3}], v{AQK+12} offset:{ks*2048}")
        A(f"ds_read_b128 v[{KXF+8*ks+4}:{KXF+8*ks+7}], v{AQK+12} offset:{ks*2048+128}")
    VXF = T + 32
    A(f"ds_read_b128 v[{VXF}:{VXF+3}], v{AQK+13}\nds_read_b128 v[{VXF+4}:{VXF+7}], v{AQK+13} offset:16")
    A("s_waitcnt lgkmcnt(0)")
    for ks in range(4):
        for tl, src in enumerate((KMF + 4 * ks, KXF + 8 * ks, KXF + 8 * ks + 4)):
            d = vr(S0 + 4 * tl, 4)
            A(f"v_mfma_f32_16x16x32_bf16 {d}, v[{src}:{src+3}], v[{QF+4*ks}:{QF+4*ks+3}], {'0' if ks == 0 else d}")
    A("s_nop 7")
    m, t2 = T, T + 1
    A(f"v_max3_f32 v{m}, v{S0}, v{S0+1}, v{S0+2}")
    for r in range(3, 11, 2):
        A(f"v_max3_f32 v{m}, v{m}, v{S0+r}, v{S0+r+1}")
    A(f"v_max_f32 v{m}, v{m}, v{S0+11}")

    def xgroup(op):
        A(f"""v_mov_b32 v{t2}, v{m}
        s_nop 1
        v_permlane16_swap_b32 v{m}, v{t2}
        s_nop 1
        {op} v{m}, v{m}, v{t2}
        v_mov_b32 v{t2}, v{m}
        s_nop 1
        v_permlane32_swap_b32 v{m}, v{t2}
        s_nop 1
        {op} v{m}, v{m}, v{t2}""")
    xgroup("v_max_f32")
    A(f"v_mul_f32 v{m}, s{S_CS}, v{m}")
    for r in range(12):
        A(f"v_fma_f32 v{S0+r}, v{S0+r}, s{S_CS}, -v{m}")
    for r in range(12):
        A(f"v_exp_f32 v{S0+r}, v{S0+r}")
    A(f"""s_nop 0
    v_add_f32 v{m}, v{S0}, v{S0+1}
    v_add_f32 v{t2}, v{S0+2}, v{S0+3}
    v_add_f32 v{m}, v{m}, v{t2}
    v_cndmask_b32 v{m}, 0, v{m}, s[{S_M32}:{S_M32+1}]""")
    for r in range(4, 12):
        A(f"v_add_f32 v{m}, v{m}, v{S0+r}")
    xgroup("v_add_f32")
    A(f"v_rcp_f32 v{m}, v{m}\ns_nop 0")
    for r in range(12):
        A(f"v_mul_f32 v{S0+r}, v{S0+r}, v{m}")
    PA, PB, PX = T + 4, T + 6, T + 8
    A(f"""v_cvt_pk_bf16_f32 v{T+2}, v{S0}, v{S0+1}
    v_cvt_pk_bf16_f32 v{T+3}, v{S0+2}, v{S0+3}""")
    for i in range(4):
        A(f"v_cvt_pk_bf16_f32 v{PX+i}, v{S0+4+2*i}, v{S0+5+2*i}")
    A(f"""v_cndmask_b32 v{PA}, 0, v{T+2}, s[{S_M32}:{S_M32+1}]
    v_cndmask_b32 v{PA+1}, 0, v{T+3}, s[{S_M32}:{S_M32+1}]
    v_cndmask_b32 v{PB}, v{T+2}, 0, s[{S_M32}:{S_M32+1}]
    v_cndmask_b32 v{PB+1}, v{T+3}, 0, s[{S_M32}:{S_M32+1}]
    s_nop 1""")
    OA = AV
    A(f"""v_mfma_f32_16x16x32_bf16 v[{OA}:{OA+3}], v[{VXF}:{VXF+3}], v[{PX}:{PX+3}], 0
    v_mfma_f32_16x16x32_bf16 v[{OA+4}:{OA+7}], v[{VXF+4}:{VXF+7}], v[{PX}:{PX+3}], 0
    v_mfma_f32_16x16x16_bf16 v[{OA}:{OA+3}], v[{V_VM0}:{V_VM0+1}], v[{PA}:{PA+1}], v[{OA}:{OA+3}]
    v_mfma_f32_16x16x16_bf16 v[{OA+4}:{OA+7}], v[{V_VM0}:{V_VM0+1}], v[{PB}:{PB+1}], v[{OA+4}:{OA+7}]
    s_nop 7""")
    for r in range(4):
        A(f"v_cvt_pk_bf16_f32 v{T+r}, v{OA+r}, v{OA+4+r}")
    A(f"""s_mov_b64 exec, s[{S_MLO8}:{S_MLO8+1}]
    ds_write_b128 v{V_OW}, v[{T}:{T+3}]
    s_mov_b64 exec, -1
    s_waitcnt lgkmcnt(0)
    s_barrier""")
    OF = AV
    A(f"""v_add_u32 v{T}, {L_OX}, v{V_L16}
    ds_read_b128 v[{OF}:{OF+3}], v{T}
    ds_read_b128 v[{OF+4}:{OF+7}], v{T} offset:1024""")
    land = [MEMF + 8 * i for i in range(4)] + [T + 8 + 8 * i for i in range(5)]
    for i in range(9):
        ldt(6 + i, land[i])
    SUM = [T, T + 4]

    def tile_reg(c2, t):
        kind, idx = o_loc(c2, t)
        return idx if kind == "R" else land[idx - 6]
    for r in range(16):
        A(f"v_mov_b32 v{AQK+r}, 0")
    A("s_waitcnt lgkmcnt(0)")
    sums = {}
    for hp in range(2):
        tl = [(2 * hp, 2 * hp + 4), (2 * hp + 1, 2 * hp + 5)]
        k = 0
        for (ta, tb) in tl:
            for t in (ta, tb):
                for c2 in range(2):
                    smf(AQK + 4 * k, OF + 4 * c2, tile_reg(c2, t))
                k += 1
        A("s_nop 7")
        for pi in range(2):
            a, b = AQK + 8 * pi, AQK + 8 * pi + 4
            for r in range(4):
                A(f"v_permlane32_swap_b32 v{a+r}, v{b+r}")
        A("s_nop 1")
        for pi in range(2):
            a, b = AQK + 8 * pi, AQK + 8 * pi + 4
            for r in range(4):
                dst = (T + 4 * pi + r) if hp == 0 else (a + r)
                A(f"v_add_f32 v{dst}, v{a+r}, v{b+r}")
                sums[(2 * hp + pi, r)] = dst
        if hp == 0:
            for r in range(16):
                A(f"v_mov_b32 v{AQK+r}, 0")
            A("s_nop 1")
    PK = MEMF
    for r in range(4):
        A(f"v_cvt_pk_bf16_f32 v{PK+2*r}, v{sums[(0,r)]}, v{sums[(1,r)]}")
        A(f"v_cvt_pk_bf16_f32 v{PK+2*r+1}, v{sums[(2,r)]}, v{sums[(3,r)]}")
    A(f"""s_add_u32 s{S_T0+4}, s{S_SLOT}, 32768
    buffer_store_dwordx4 v[{PK}:{PK+3}], v{V_WR}, s[{S_WS}:{S_WS+3}], s{S_SLOT} offen
    buffer_store_dwordx4 v[{PK+4}:{PK+7}], v{V_WR}, s[{S_WS}:{S_WS+3}], s{S_T0+4} offen""")
    R0 = T
    lp = A.uniq("pollR")
    A(f"s_mov_b32 s{S_T0}, 0")
    A.label(lp)
    A(f"""buffer_load_dwordx4 v[{R0}:{R0+3}], v{V_RD}, s[{S_WS}:{S_WS+3}], s{S_SLOT} offen sc1
    buffer_load_dwordx4 v[{R0+4}:{R0+7}], v{V_RD}, s[{S_WS}:{S_WS+3}], s{S_SLOT} offen offset:1024 sc1
    s_add_u32 s{S_T0}, s{S_T0}, 1
    s_cmp_gt_u32 s{S_T0}, {TEAM_SPIN}
    s_cbranch_scc1 TEAM_DONE
    s_waitcnt vmcnt(0)
    v_max3_u32 v{R0+8}, v{R0}, v{R0+1}, v{R0+2}
    v_max3_u32 v{R0+9}, v{R0+3}, v{R0+4}, v{R0+5}
    v_max3_u32 v{R0+8}, v{R0+8}, v{R0+6}, v{R0+7}
    v_max_u32 v{R0+8}, v{R0+8}, v{R0+9}
    v_cmp_eq_u32 vcc, s{S_NEG1}, v{R0+8}
    s_cbranch_vccnz {lp}""")
    X = R0 + 8
    for i in range(4):
        A(f"""v_lshlrev_b32 v{X+2*i}, 16, v{R0+i}
        v_and_b32 v{X+2*i+1}, 0xffff0000, v{R0+i}
        v_lshlrev_b32 v{X+8+2*i}, 16, v{R0+4+i}
        v_and_b32 v{X+8+2*i+1}, 0xffff0000, v{R0+4+i}""")
    for i in range(8):
        A(f"v_add_f32 v{X+i}, v{X+i}, v{X+8+i}")
    A("s_nop 1")
    for v in range(4):
        A(f"v_permlane32_swap_b32 v{X+v}, v{X+4+v}")
    A("s_nop 1")
    for v in range(4):
        A(f"v_add_f32 v{X+v}, v{X+v}, v{X+4+v}")
    A(f"""s_nop 1
    v_permlane16_swap_b32 v{X}, v{X+2}
    v_permlane16_swap_b32 v{X+1}, v{X+3}
    s_nop 1
    v_add_f32 v{X}, v{X}, v{X+2}
    v_add_f32 v{X+1}, v{X+1}, v{X+3}
    s_nop 1
    v_add_f32_dpp v{X}, v{X}, v{X} row_ror:4 row_mask:0xf bank_mask:0xf
    v_add_f32_dpp v{X+1}, v{X+1}, v{X+1} row_ror:4 row_mask:0xf bank_mask:0xf
    s_nop 1
    v_add_f32_dpp v{X}, v{X}, v{X} row_ror:8 row_mask:0xf bank_mask:0xf
    v_add_f32_dpp v{X+1}, v{X+1}, v{X+1} row_ror:8 row_mask:0xf bank_mask:0xf
    v_cvt_pk_bf16_f32 v{X}, v{X}, v{X+1}
    s_mov_b64 exec, s[{S_MPUB}:{S_MPUB+1}]
    buffer_store_dword v{X}, v{V_PUB}, s[{S_WS}:{S_WS+3}], s{S_MEMO} offen
    s_mov_b64 exec, -1
    v_mov_b32 v{R0}, -1
    v_mov_b32 v{R0+1}, -1
    v_mov_b32 v{R0+2}, -1
    v_mov_b32 v{R0+3}, -1
    buffer_store_dwordx4 v[{R0}:{R0+3}], v{V_RD}, s[{S_WS}:{S_WS+3}], s{S_SLOT} offen
    buffer_store_dwordx4 v[{R0}:{R0+3}], v{V_RD}, s[{S_WS}:{S_WS+3}], s{S_SLOT} offen offset:1024""")
    lp = A.uniq("pollG")
    A(f"s_mov_b32 s{S_T0}, 0\ns_add_u32 s{S_T0+4}, s{S_MEMO}, 4096")
    A.label(lp)
    for c in range(8):
        so = S_MEMO if c < 4 else S_T0 + 4
        A(f"buffer_load_dwordx4 v[{MEMF+4*c}:{MEMF+4*c+3}], v{V_L16}, s[{S_WS}:{S_WS+3}], s{so} offen offset:{(c%4)*1024} sc1")
    A(f"""s_add_u32 s{S_T0}, s{S_T0}, 1
    s_cmp_gt_u32 s{S_T0}, {TEAM_SPIN}
    s_cbranch_scc1 TEAM_DONE
    s_waitcnt vmcnt(0)
    v_max3_u32 v{X}, v{MEMF}, v{MEMF+1}, v{MEMF+2}""")
    for k in range(3, 31, 2):
        A(f"v_max3_u32 v{X}, v{X}, v{MEMF+k}, v{MEMF+k+1}")
    A(f"""v_max_u32 v{X}, v{X}, v{MEMF+31}
    v_cmp_eq_u32 vcc, s{S_NEG1}, v{X}
    s_cbranch_vccnz {lp}
    s_xor_b32 s{S_SLOT}, s{S_SLOT}, {TSLOT}
    s_add_u32 s{S_MEMO}, s{S_MEMO}, 8192
    s_add_u32 s{S_STEP}, s{S_STEP}, 1
    s_branch TEAM_STEP""")
    A.label("TEAM_DONE")
    if timing:
        A(f"""s_memtime s[{S_TIME+2}:{S_TIME+3}]
        s_waitcnt lgkmcnt(0)
        s_sub_u32 s{S_TIME+2}, s{S_TIME+2}, s{S_TIME}
        v_mov_b32 v{T}, s{S_TIME+2}
        v_mov_b32 v{T+1}, s{S_STEP}
        v_mov_b32 v{T+2}, {16*4}
        s_cmp_lg_u32 s{S_RANK}, 0
        s_cbranch_scc1 TEAM_END
        s_cmp_lg_u32 s{S_WAVE}, 0
        s_cbranch_scc1 TEAM_END
        s_mov_b64 exec, 1
        buffer_store_dwordx2 v[{T}:{T+1}], v{T+2}, s[{S_DBG}:{S_DBG+3}], 0 offen""")
        A.label("TEAM_END")
    A("s_waitcnt vmcnt(0)\ns_endpgm")
```

```python
import sys, os
sys.path.insert(0, os.path.dirname(os.path.abspath(__file__)))
from asmlib import *
from roles import *
import team as TM

NAME = "parallel_sum__memory_aug_recurrent_mem_tr__glu_gated_geglu__prompt"
NRED = 52
HEADER = open("cdna_kernels/" + NAME + ".s.ref").read().split("; Override launch geometry")[0]


def kd(name):
    return f""".p2align 6
.amdhsa_kernel {name}
  .amdhsa_next_free_vgpr 512
  .amdhsa_next_free_sgpr 102
  .amdhsa_accum_offset 256
  .amdhsa_group_segment_fixed_size 0
  .amdhsa_kernarg_size 112
  .amdhsa_user_sgpr_count 2
  .amdhsa_user_sgpr_kernarg_segment_ptr 1
  .amdhsa_system_sgpr_workgroup_id_x 1
.end_amdhsa_kernel
"""


def entry(A, name, nwg):
    A.raw(f".globl {name}\n.p2align 8\n.type {name},@function")
    A.label(name)
    A(f"s_cmp_ge_u32 s2, {nwg}\ns_cbranch_scc1 EXIT")
    prologue(A)


def dispatch(A, sidx, table):
    base = 0
    for cnt, lab in table:
        A(f"""s_sub_u32 s{S_INST}, s{sidx}, {base}
        s_cmp_lt_u32 s{sidx}, {base+cnt}
        s_cbranch_scc1 {lab}""")
        base += cnt
    A("s_endpgm")


def team_select(A, fused):
    SX, SR = S_T0 + 8, S_T0 + 9
    sk = A.uniq("ts")
    A(f"""s_getreg_b32 s{SX}, hwreg(HW_REG_XCC_ID)
    s_and_b32 s{SX}, s{SX}, 7
    s_cmp_lg_u32 s{S_WAVE}, 0
    s_cbranch_scc1 {sk}
    s_lshl_b32 s{S_T0}, s{SX}, 2
    v_mov_b32 v49, s{S_T0}
    v_mov_b32 v48, 1
    s_mov_b64 exec, 1
    buffer_atomic_add v48, v49, s[{S_DBG}:{S_DBG+3}], 0 offen sc0
    s_mov_b64 exec, -1""")
    A.label(sk)


def team_select_finish(A, fused):
    SX, SR = S_T0 + 8, S_T0 + 9
    sk = A.uniq("tf")
    nw = A.uniq("tfnw")
    lp = A.uniq("tfp")
    isw = A.uniq("tfw")
    A(f"""s_cmp_lg_u32 s{S_WAVE}, 0
    s_cbranch_scc1 {sk}
    s_waitcnt vmcnt(0)
    v_readfirstlane_b32 s{SR}, v48
    s_mov_b64 exec, 1
    s_cmp_lg_u32 s{SR}, 31
    s_cbranch_scc1 {nw}
    s_add_u32 s{S_T0}, s{SX}, 1
    v_mov_b32 v50, s{S_T0}
    v_mov_b32 v51, 0
    v_mov_b32 v49, {DB_WIN*4}
    buffer_atomic_cmpswap v[50:51], v49, s[{S_DBG}:{S_DBG+3}], 0 offen""")
    A.label(nw)
    A(f"v_mov_b32 v49, {DB_WIN*4}\ns_mov_b32 s{S_T0}, 0")
    A.label(lp)
    A(f"""buffer_load_dword v50, v49, s[{S_DBG}:{S_DBG+3}], 0 offen sc1
    s_add_u32 s{S_T0}, s{S_T0}, 1
    s_waitcnt vmcnt(0)
    v_readfirstlane_b32 s{S_T0+1}, v50
    s_cmp_gt_u32 s{S_T0}, {SPIN_MAX}
    s_cselect_b32 s{S_T0+1}, 99, s{S_T0+1}
    s_cmp_eq_u32 s{S_T0+1}, 0
    s_cbranch_scc1 {lp}
    s_sub_u32 s{S_T0+1}, s{S_T0+1}, 1
    s_cmp_lg_u32 s{S_T0+1}, s{SX}
    s_cselect_b32 s{SR}, 999, s{SR}
    v_mov_b32 v50, s{SR}
    s_cmp_lt_u32 s{SR}, 32
    s_cbranch_scc1 {isw}
    v_mov_b32 v49, {DB_TICKET*4}
    v_mov_b32 v50, 1
    buffer_atomic_add v50, v49, s[{S_DBG}:{S_DBG+3}], 0 offen sc0
    s_waitcnt vmcnt(0)
    v_add_u32 v50, 32, v50""")
    A.label(isw)
    A(f"""v_mov_b32 v49, {TM.L_MISC}
    ds_write_b32 v49, v50
    s_waitcnt lgkmcnt(0)
    s_mov_b64 exec, -1""")
    A.label(sk)
    A(f"""s_barrier
    v_mov_b32 v49, {TM.L_MISC}
    ds_read_b32 v50, v49
    s_waitcnt lgkmcnt(0)
    v_readfirstlane_b32 s{SR}, v50
    s_barrier""")


def all_roles(A, timing):
    role_kv(A, False)
    role_kv(A, True)
    role_gu(A)
    role_qatt(A)
    role_part(A, False)
    role_part(A, True)
    role_reduce(A, NRED)
    TM.role_team(A, timing=timing)


def gen_split(timing=True):
    A = Asm()
    L = TM.LDS_BYTES
    ks = [("k_ln_kernel", 256), ("k_g1_kernel", 92), ("k_team_kernel", 256), ("k_qa_kernel", 32), ("k_g2_kernel", 48), ("k_red_kernel", NRED)]
    head = HEADER + "".join(f"; @launch kernel={k} grid=({g},1,1) block=(256,1,1) lds={L}\n" for k, g in ks)
    A.raw('.amdgcn_target "amdgcn-amd-amdhsa--gfx950"\n.text')
    entry(A, "k_ln_kernel", 256)
    A(f"s_mov_b32 s{S_SYNC}, 0")
    ln_load(A, 2)
    A("s_waitcnt vmcnt(0)")
    ln_compute(A, 2)
    A("s_waitcnt vmcnt(0)")
    A.label("EXIT")
    A("s_endpgm")
    entry(A, "k_g1_kernel", 92)
    A(f"s_mov_b32 s{S_SYNC}, 0")
    dispatch(A, 2, [(32, "ROLE_K"), (32, "ROLE_V"), (28, "ROLE_GU")])
    entry(A, "k_team_kernel", 256)
    A(f"s_mov_b32 s{S_SYNC}, 0")
    team_select(A, False)
    team_select_finish(A, False)
    dispatch(A, S_T0 + 9, [(32, "ROLE_TEAM")])
    entry(A, "k_qa_kernel", 32)
    A(f"s_mov_b32 s{S_SYNC}, 0")
    dispatch(A, 2, [(32, "ROLE_QA")])
    entry(A, "k_g2_kernel", 48)
    A(f"s_mov_b32 s{S_SYNC}, 0")
    dispatch(A, 2, [(32, "ROLE_WO"), (16, "ROLE_DOWN")])
    entry(A, "k_red_kernel", NRED)
    A(f"s_mov_b32 s{S_SYNC}, 0")
    dispatch(A, 2, [(NRED, "ROLE_RED")])
    all_roles(A, timing)
    A.raw('.section .rodata,"a"')
    for k, g in ks:
        A.raw(kd(k))
    return head + A.text()


def gen_fused(timing=False):
    A = Asm()
    L = TM.LDS_BYTES
    kn = NAME + "_kernel"
    head = HEADER + f"; @launch grid=(256,1,1) block=(256,1,1) lds={L}\n"
    A.raw('.amdgcn_target "amdgcn-amd-amdhsa--gfx950"\n.text')
    entry(A, kn, 256)
    A(f"s_mov_b32 s{S_SYNC}, 1")
    ln_load(A, 2)
    team_select(A, True)
    sk = A.uniq("init")
    A(f"""s_cmp_ge_u32 s2, 4
    s_cbranch_scc1 {sk}
    s_lshl_b32 s{S_T0}, s2, 10
    v_lshlrev_b32 v52, 2, v0
    v_mov_b32 v53, 0
    buffer_store_dword v53, v52, s[{S_WS}:{S_WS+3}], s{S_T0} offen sc1""")
    A.label(sk)
    A("s_waitcnt vmcnt(0)")
    ln_compute(A, 2)
    sk = A.uniq("init2")
    A(f"""s_cmp_ge_u32 s2, 4
    s_cbranch_scc1 {sk}
    s_cmp_lg_u32 s{S_WAVE}, 0
    s_cbranch_scc1 {sk}
    v_mov_b32 v52, {DB_INIT*4}
    v_mov_b32 v53, 1
    s_mov_b64 exec, 1
    buffer_atomic_add v53, v52, s[{S_DBG}:{S_DBG+3}], 0 offen
    s_mov_b64 exec, -1""")
    A.label(sk)
    team_select_finish(A, True)
    A(f"""v_mov_b32 v4, 0
    s_mov_b32 s{S_T0+5}, 3""")
    wait_words(A, S_DBG, 4, DB_INIT * 4, 1, S_T0 + 5, 5)
    dispatch(A, S_T0 + 9, [(32, "ROLE_TEAM"), (32, "ROLE_K"), (32, "ROLE_V"), (32, "ROLE_QA"), (28, "ROLE_GU"),
                           (32, "ROLE_WO"), (16, "ROLE_DOWN"), (NRED, "ROLE_RED")])
    A.label("EXIT")
    A("s_endpgm")
    all_roles(A, timing)
    A.raw('.section .rodata,"a"')
    A.raw(kd(kn))
    return head + A.text()


if __name__ == "__main__":
    mode = sys.argv[1] if len(sys.argv) > 1 else "fused"
    out = sys.argv[2] if len(sys.argv) > 2 else "cdna_kernels/" + NAME + ".s"
    txt = gen_split() if mode == "split" else gen_fused(timing=(mode == "fusedt"))
    open(out, "w").write(txt)
    print("wrote", out, len(txt), "bytes")
```
